```python
import torch

def _softmax(x, axis=-1):
    return torch.softmax(x, dim=axis)
def _gelu(x):
    return torch.nn.functional.gelu(x, approximate="tanh")
def _silu(x):
    return torch.nn.functional.silu(x)
def _sigmoid(x):
    return torch.sigmoid(x)
def _layernorm(x, axis=-1, eps=1e-5):
    m = x.mean(dim=axis, keepdim=True)
    v = x.var(dim=axis, keepdim=True, unbiased=False)
    return (x - m) / torch.sqrt(v + eps)
def _scatter_add(tgt, idx, src, axis=0):
    return tgt.clone().index_add_(axis, idx, src)
def _segment_sum(src, seg, n):
    out = torch.zeros((n,) + src.shape[1:], dtype=src.dtype)
    return out.index_add_(0, seg, src)
def _pad(x, pw):
    flat = tuple(v for pair in reversed(pw) for v in pair)
    return torch.nn.functional.pad(x, flat)

kernel_name = 'recurrent_scan__sliding_block_cached__swiglu_ffn__decode'

def setup_inputs():

    _w = (lambda a: (lambda t: t.to(torch.bfloat16) if t.is_floating_point() else t)(torch.as_tensor(a)))
    def _A_setup():
        B, Sq, D = 1, 1, 512
        Hq, Hkv, Sk, Dh = 32, 8, 16384, 128
        assert Hq % Hkv == 0, (Hq, Hkv)
        return {
            "x": _w((lambda *s: torch.randn(*s, dtype=torch.bfloat16) * 0.05)(B, Sq, D)),
            "k_cache": _w((lambda *s: torch.randn(*s, dtype=torch.bfloat16) * 1.6)(B, Hkv, Sk, Dh)),
            "v_cache": _w((lambda *s: torch.randn(*s, dtype=torch.bfloat16) * 0.2)(B, Hkv, Sk, Dh)),
            "wq": _w((lambda *s: torch.randn(*s, dtype=torch.bfloat16) * 1.6)(D, Hq * Dh) * (D ** -0.5)),
            "wo": _w((lambda *s: torch.randn(*s, dtype=torch.bfloat16) * 0.2)(Hq * Dh, D) * ((Hq * Dh) ** -0.5)),
        }
    _A_in = _A_setup()

    def _B_setup():
        B, S, D, F = 1, 1, 512, 1792
        return {
            "x": _w((lambda *s: torch.randn(*s, dtype=torch.bfloat16) * 0.05)(B, S, D)),
            "w_gate": _w((lambda *s: torch.randn(*s, dtype=torch.bfloat16) * 0.1)(D, F)),
            "w_up": _w((lambda *s: torch.randn(*s, dtype=torch.bfloat16) * 0.1)(D, F)),
            "w_down": _w((lambda *s: torch.randn(*s, dtype=torch.bfloat16) * 0.1)(F, D)),
        }
    _B_in = _B_setup()

    return {
        "A_x": _A_in["x"],
        "A_k_cache": _A_in["k_cache"],
        "A_v_cache": _A_in["v_cache"],
        "A_wq": _A_in["wq"],
        "A_wo": _A_in["wo"],
        "B_x": _B_in["x"],
        "B_w_gate": _B_in["w_gate"],
        "B_w_up": _B_in["w_up"],
        "B_w_down": _B_in["w_down"],
    }

def reference(A_x, A_k_cache, A_v_cache, A_wq, A_wo, B_x, B_w_gate, B_w_up, B_w_down):
    def _A_ref(x, k_cache, v_cache, wq, wo):
        B, Sq, D = x.shape
        Hq, Dh = 32, 128
        Hkv, Sk = k_cache.shape[1], k_cache.shape[2]
        W = min(4096, max(256, Sk // 4))
        rep = Hq // Hkv
        q = (lambda x, *d: x.permute(*d))((x @ wq).reshape(B, Sq, Hq, Dh), 0, 2, 1, 3)
        k = (lambda x, n, axis: torch.repeat_interleave(x, n, dim=axis))(k_cache[:, :, Sk - W:, :], rep, axis=1)
        v = (lambda x, n, axis: torch.repeat_interleave(x, n, dim=axis))(v_cache[:, :, Sk - W:, :], rep, axis=1)
        scores = torch.einsum("bhqd,bhkd->bhqk", q, k) * (Dh ** -0.5)
        p = _softmax(scores, axis=-1)
        o = torch.einsum("bhqk,bhkd->bhqd", p, v)
        return (lambda x, *d: x.permute(*d))(o, 0, 2, 1, 3).reshape(B, Sq, Hq * Dh) @ wo

    def _B_ref(x, w_gate, w_up, w_down):
        g = _silu(x @ w_gate)
        u = x @ w_up
        return (g * u) @ w_down

    x = A_x
    xn = _layernorm(x, axis=-1)
    s = _A_ref(xn, A_k_cache, A_v_cache, A_wq, A_wo)
    g = _silu(_B_ref(xn, B_w_gate, B_w_up, B_w_down))
    return x + s * g
```

```python
KN = "recurrent_scan__sliding_block_cached__swiglu_ffn__decode_kernel"
HEADER_COMMENT = open("recurrent_scan__sliding_block_cached__swiglu_ffn__decode.s.ref").read().split("; Override launch")[0]
class K:
    def __init__(self):
        self.lines = []
        self.lab = 0
    def __call__(self, s):
        for l in s.strip("\n").split("\n"):
            self.lines.append("    " + l.strip() if not l.strip().endswith(":") else l.strip())
    def label(self, base="L"):
        self.lab += 1
        return f"{base}_{self.lab}"
    def text(self):
        return "\n".join(self.lines)
def wrap(body, grid, block, lds, vgpr=256, sgpr=102, accum=None, name=KN, extra_desc=""):
    if accum is None: accum = (vgpr + 3)//4*4
    return f"""{HEADER_COMMENT}; @launch grid=({grid},1,1) block=({block},1,1) lds={lds}
.amdgcn_target "amdgcn-amd-amdhsa--gfx950"
.text
.globl {name}
.p2align 8
.type {name},@function
{name}:
{body}
s_endpgm
.section .rodata,"a"
.p2align 6
.amdhsa_kernel {name}
  .amdhsa_next_free_vgpr {vgpr}
  .amdhsa_next_free_sgpr {sgpr}
  .amdhsa_accum_offset {accum}
  .amdhsa_group_segment_fixed_size 0
  .amdhsa_kernarg_size 96
  .amdhsa_user_sgpr_count 2
  .amdhsa_user_sgpr_kernarg_segment_ptr 1
  .amdhsa_system_sgpr_workgroup_id_x 1
{extra_desc}.end_amdhsa_kernel
"""
```

```python
import sys
from asmlib import *

QA, GA, SA, FA, OA = 0x10000, 0x20000, 0x30000, 0x40000, 0x80000
TS = 0x8000000
XN, QL, GL, PL, ZL, FL, MX, OL, HL, XR = 0, 1024, 2048, 3072, 4096, 4352, 4416, 4608, 4864, 5120
WQ, GU, VV, WO, DN = 8192, 24576, 40960, 73728, 90112
LDS_SIZE = 98304
LOG2E = 0x3fb8aa3b
SCALE = 0x3db504f3
EPS = 0x3727c5ac
SPIN_MAX = 0x40000

def gen(stamps=False, nv1=6, NT=" nt"):
    k = K()
    nst = [0]
    def stamp():
        if not stamps: return
        i = 64 + 2*nst[0]; nst[0] += 1
        assert i < 96
        k(f"s_memrealtime s[{i}:{i+1}]")
    sW, sG, sS, sRQ, sCG, sFS, sMAT, sFG, sVAL = 3, 28, 29, 30, 31, 32, 33, 34, 35
    sE, sT, sT1, sT2, sT3, sT0x = 36, 37, 38, 39, 40, 41
    sCM = 44
    sA, sB, sC, sD = 48, 49, 50, 51
    sGUP = 52
    sHH = 54; sSPIN = 55; sNL = 56; sL2E = 57; sXCC = 58; sTMP = 59; sOC = 60; sKV = 61
    vL, vROWL, vCH = 1, 2, 3
    vWQ, vGU, vK, vVe, vVo, vWO, vDN = 4, 5, 6, 7, 8, 9, 10
    vTR, vTRV0, vTRV1, vP1, vP1W, vM = 11, 12, 13, 14, 15, 120
    KF = 16
    XRAW = 48
    PF = 52
    BF = 56
    AF = 88
    vt = [121,122,123,124,125,126,127]
    vMASK = 128
    D0, D1, DL = 132, 136, 140
    T = 144
    vQA0, vQA1, vPW, vPR, vMXR, vOST, vSST, vH2, vH2S, vOW, vFR, vF3, vG16 = 176,177,178,179,180,181,182,183,184,185,186,187,188
    ONES = 192
    NV = 200

    stamp()
    k(f"""
    s_cmp_ge_u32 s2, 256
    s_cbranch_scc1 L_end
    s_load_dwordx16 s[4:19], s[0:1], 0
    s_load_dwordx8 s[20:27], s[0:1], 64
    s_getpc_b64 s[{sA}:{sA+1}]
    v_lshlrev_b32 v{vt[0]}, 4, v0
    v_lshrrev_b32 v{vt[1]}, 6, v0
    global_load_dwordx4 v[{PF}:{PF+3}], v{vt[0]}, s[{sA}:{sA+1}]
    v_and_b32 v{vL}, 63, v0
    v_readfirstlane_b32 s{sW}, v{vt[1]}
    s_and_b32 s{sG}, s2, 7
    s_lshr_b32 s{sS}, s2, 3
    s_lshr_b32 s{sRQ}, s2, 6
    s_and_b32 s{sCG}, s{sS}, 7
    s_lshr_b32 s{sFS}, s{sCG}, 1
    s_and_b32 s{sMAT}, s{sCG}, 1
    s_lshl_b32 s{sFG}, s{sFS}, 3
    s_add_u32 s{sFG}, s{sFG}, s{sG}
    s_cmp_lt_u32 s{sFG}, 28
    s_cselect_b32 s{sVAL}, 1, 0
    s_cselect_b32 s{sTMP}, 0, 1
    s_sub_u32 s{sFS}, s{sFS}, s{sTMP}
    s_lshl_b32 s{sTMP}, s{sTMP}, 3
    s_sub_u32 s{sFG}, s{sFG}, s{sTMP}
    v_lshrrev_b32 v{vt[1]}, 5, v{vL}
    v_bfe_u32 v{vt[2]}, v{vL}, 3, 2
    v_lshl_add_u32 v{vROWL}, v{vt[1]}, 3, v{vt[2]}
    v_lshrrev_b32 v{vG16}, 4, v{vL}
    v_lshlrev_b32 v{vt[3]}, 1, v{vG16}
    v_and_b32 v{vt[4]}, 7, v{vL}
    v_xor_b32 v{vt[4]}, v{vt[4]}, v{vt[3]}
    v_lshlrev_b32 v{vCH}, 4, v{vt[4]}
    s_lshl_b32 s{sA}, s{sRQ}, 2
    s_add_u32 s{sA}, s{sA}, s{sW}
    s_mul_i32 s{sB}, s{sA}, {32*3584}
    s_lshl_b32 s{sA}, s{sA}, 18
    s_lshl_b32 s{sC}, s{sG}, 10
    s_add_u32 s{sA}, s{sA}, s{sC}
    s_lshl_b32 s{sC}, s{sCG}, 7
    s_add_u32 s{sA}, s{sA}, s{sC}
    s_lshl_b32 s{sC}, s{sFG}, 7
    s_add_u32 s{sB}, s{sB}, s{sC}
    v_lshl_add_u32 v{vWQ}, v{vROWL}, 13, v{vCH}
    v_add_u32 v{vWQ}, s{sA}, v{vWQ}
    v_mul_u32_u24 v{vGU}, 3584, v{vROWL}
    v_add3_u32 v{vGU}, v{vGU}, v{vCH}, s{sB}
    s_lshl_b32 s{sKV}, s{sG}, 22
    s_lshl_b32 s{sC}, s{sS}, 15
    s_add_u32 s{sKV}, s{sKV}, s{sC}
    s_lshl_b32 s{sC}, s{sW}, 13
    s_add_u32 s{sKV}, s{sKV}, s{sC}
    s_add_u32 s{sKV}, s{sKV}, 0x300000
    s_add_u32 s{sC}, s{sKV}, 0x1000
    v_and_b32 v{vM}, 15, v{vL}
    v_lshlrev_b32 v{vK}, 8, v{vM}
    v_lshl_add_u32 v{vK}, v{vG16}, 4, v{vK}
    v_add_u32 v{vK}, s{sC}, v{vK}
    v_lshlrev_b32 v{vt[0]}, 4, v{vL}
    s_lshl_b32 s{sD}, s{sW}, 12
    s_add_u32 m0, s{sD}, {WQ}
    s_cmp_eq_u32 s{sMAT}, 0
    s_waitcnt lgkmcnt(0)
    """)
    stamp()
    k(f"""
    global_load_dwordx4 v[{XRAW}:{XRAW+3}], v{vt[0]}, s[4:5]
    s_cselect_b64 s[{sGUP}:{sGUP+1}], s[16:17], s[18:19]
    s_load_dword s{sE}, s[26:27], 0
    """)
    def tile_loads(v, base, stride, n=4):
        prev = 0
        for i in range(n):
            cur = (16*(i&1) + 4*(i>>1))*stride - 1024*i
            if i: k(f"v_add_u32 v{v}, {(cur-prev) & 0xffffffff}, v{v}")
            prev = cur
            k(f"global_load_lds_dwordx4 v{v}, s[{base}:{base+1}] offset:{1024*i}{NT}")
    tile_loads(vWQ, 10, 8192)
    k(f"s_add_u32 m0, m0, {GU-WQ}")
    k("s_nop 0")
    tile_loads(vGU, sGUP, 3584)
    for t in range(2):
        for st in range(4):
            r = KF + (t*4+st)*4
            k(f"global_load_dwordx4 v[{r}:{r+3}], v{vK}, s[6:7] offset:{(t-1)*4096 + st*64}{NT}")
    stamp()
    k(f"""
    s_getreg_b32 s{sXCC}, hwreg(HW_REG_XCC_ID)
    s_mov_b32 s{sCM}, 0xf0f0f0f0
    s_mov_b32 s{sCM+1}, 0xf0f0f0f0
    s_mov_b32 s{sL2E}, {LOG2E}
    s_mov_b32 s{sNL}, 0
    v_mov_b32 v{vMASK}, 0xffffff00
    ; V voff
    v_xor_b32 v{vt[1]}, v{vM}, v{vt[3]}
    v_lshlrev_b32 v{vt[1]}, 4, v{vt[1]}
    v_lshl_add_u32 v{vVe}, v{vG16}, 8, v{vt[1]}
    v_add_u32 v{vVe}, s{sKV}, v{vVe}
    v_xor_b32 v{vVo}, 0x80, v{vVe}
    s_lshl_b32 s{sHH}, s{sG}, 2
    s_add_u32 s{sHH}, s{sHH}, s{sRQ}
    s_lshl_b32 s{sA}, s{sHH}, 17
    s_lshl_b32 s{sB}, s{sW}, 15
    s_add_u32 s{sA}, s{sA}, s{sB}
    s_lshl_b32 s{sB}, s{sCG}, 7
    s_add_u32 s{sA}, s{sA}, s{sB}
    v_lshl_add_u32 v{vDN}, v{vROWL}, 10, v{vCH}
    v_add_u32 v{vWO}, s{sA}, v{vDN}
    s_lshl_b32 s{sOC}, s{sRQ}, 1
    s_add_u32 s{sOC}, s{sOC}, s{sMAT}
    s_lshl_b32 s{sA}, s{sFG}, 16
    s_lshr_b32 s{sB}, s{sW}, 1
    s_lshl_b32 s{sB}, s{sB}, 15
    s_add_u32 s{sA}, s{sA}, s{sB}
    s_and_b32 s{sB}, s{sW}, 1
    s_lshl_b32 s{sB}, s{sB}, 12
    s_add_u32 s{sA}, s{sA}, s{sB}
    s_lshl_b32 s{sB}, s{sOC}, 7
    s_add_u32 s{sA}, s{sA}, s{sB}
    v_add_u32 v{vDN}, s{sA}, v{vDN}
    v_lshrrev_b32 v{vt[1]}, 2, v{vL}
    v_xor_b32 v{vt[2]}, s{sW}, v{vt[2]}
    v_lshlrev_b32 v{vt[2]}, 5, v{vt[2]}
    v_and_b32 v{vt[4]}, 3, v{vL}
    v_lshl_add_u32 v{vt[2]}, v{vt[4]}, 3, v{vt[2]}
    v_lshl_add_u32 v{vTR}, v{vt[1]}, 7, v{vt[2]}
    s_lshl_b32 s{sB}, s{sW}, 1
    v_and_b32 v{vt[5]}, 7, v{vt[1]}
    v_xor_b32 v{vt[5]}, s{sB}, v{vt[5]}
    v_lshlrev_b32 v{vt[5]}, 5, v{vt[5]}
    v_lshl_add_u32 v{vt[5]}, v{vt[4]}, 3, v{vt[5]}
    v_lshl_add_u32 v{vTRV0}, v{vt[1]}, 8, v{vt[5]}
    v_add_u32 v{vTRV0}, {VV}, v{vTRV0}
    v_xor_b32 v{vTRV1}, 32, v{vTRV0}
    v_mov_b32 v{T}, 0
    v_mov_b32 v{T+1}, 0
    v_mov_b32 v{T+2}, 0
    v_mov_b32 v{T+3}, 0
    v_lshlrev_b32 v{vt[5]}, 4, v{vM}
    ds_write_b128 v{vt[5]}, v[{T}:{T+3}] offset:{ZL}
    ds_write_b32 v{T}, v{T} offset:{FL}
    """)
    X = T
    k(f"s_waitcnt vmcnt(16)")
    stamp()
    k(f"ds_write_b128 v{vt[0]}, v[{XRAW}:{XRAW+3}] offset:{XR}")
    for i in range(4):
        k(f"v_lshlrev_b32 v{X+2*i}, 16, v{XRAW+i}")
        k(f"v_and_b32 v{X+2*i+1}, 0xffff0000, v{XRAW+i}")
    S = T+8
    def wave_sum(v, sdst):
        for m in ("quad_perm:[1,0,3,2] row_mask:0xf", "quad_perm:[2,3,0,1] row_mask:0xf", "row_half_mirror row_mask:0xf", "row_mirror row_mask:0xf", "row_bcast:15 row_mask:0xa", "row_bcast:31 row_mask:0xc"):
            k("s_nop 1")
            k(f"v_add_f32_dpp v{v}, v{v}, v{v} {m} bank_mask:0xf")
        k("s_nop 0")
        k(f"v_readlane_b32 s{sdst}, v{v}, 63")
    k(f"""
    v_add_f32 v{S}, v{X}, v{X+1}
    v_add_f32 v{S+1}, v{X+2}, v{X+3}
    v_add_f32 v{S+2}, v{X+4}, v{X+5}
    v_add_f32 v{S+3}, v{X+6}, v{X+7}
    v_add_f32 v{S}, v{S}, v{S+1}
    v_add_f32 v{S+2}, v{S+2}, v{S+3}
    v_add_f32 v{S}, v{S}, v{S+2}
    """)
    wave_sum(S, sA)
    k(f"""
    s_nop 1
    v_mov_b32 v{S+4}, 0x3b000000
    v_mul_f32 v{S+4}, s{sA}, v{S+4}
    v_sub_f32 v{S+5}, v{X}, v{S+4}
    v_mul_f32 v{S}, v{S+5}, v{S+5}
    """)
    for i in range(1, 8):
        k(f"v_sub_f32 v{S+5}, v{X+i}, v{S+4}")
        k(f"v_fmac_f32 v{S}, v{S+5}, v{S+5}")
    wave_sum(S, sA)
    k(f"""
    v_cvt_pk_bf16_f32 v{S+4}, v{S+4}, v{S+4}
    v_lshlrev_b32 v{S+4}, 16, v{S+4}       ; m bf16
    v_mov_b32 v{S+6}, 0x3b000000
    v_mul_f32 v{S+6}, s{sA}, v{S+6}        ; var
    v_cvt_pk_bf16_f32 v{S+6}, v{S+6}, v{S+6}
    v_lshlrev_b32 v{S+6}, 16, v{S+6}
    v_add_f32 v{S+6}, {EPS}, v{S+6}
    v_cvt_pk_bf16_f32 v{S+6}, v{S+6}, v{S+6}
    v_lshlrev_b32 v{S+6}, 16, v{S+6}
    v_sqrt_f32 v{S+6}, v{S+6}
    s_nop 0
    v_cvt_pk_bf16_f32 v{S+6}, v{S+6}, v{S+6}
    v_lshlrev_b32 v{S+6}, 16, v{S+6}
    v_rcp_f32 v{S+6}, v{S+6}
    """)
    for i in range(8): k(f"v_sub_f32 v{X+i}, v{X+i}, v{S+4}")
    for i in range(4): k(f"v_cvt_pk_bf16_f32 v{S+8+i}, v{X+2*i}, v{X+2*i+1}")
    for i in range(4):
        k(f"v_lshlrev_b32 v{X+2*i}, 16, v{S+8+i}")
        k(f"v_and_b32 v{X+2*i+1}, 0xffff0000, v{S+8+i}")
    for i in range(8): k(f"v_mul_f32 v{X+i}, v{X+i}, v{S+6}")
    for i in range(4): k(f"v_cvt_pk_bf16_f32 v{S+8+i}, v{X+2*i}, v{X+2*i+1}")
    k(f"""
    ds_write_b128 v{vt[0]}, v[{S+8}:{S+11}] offset:{XN}
    s_lshl_b32 s{sA}, s{sRQ}, 8
    v_lshlrev_b32 v{vFR}, 4, v{vG16}
    v_add_u32 v{vt[1]}, s{sA}, v{vFR}
    """)
    for st in range(4):
        k(f"ds_read_b128 v[{BF+4*st}:{BF+4*st+3}], v{vt[1]} offset:{XN+64*st}")
    k(f"""
    s_waitcnt lgkmcnt(0)
    s_add_u32 s{sE}, s{sE}, 0x01010108
    s_and_b32 s{sT}, s{sE}, 0xfffffff8
    s_lshr_b32 s{sT1}, s{sT}, 8
    s_lshr_b32 s{sT2}, s{sT}, 16
    s_lshr_b32 s{sT3}, s{sT}, 24
    s_and_b32 s{sT1}, s{sT1}, 0xff
    s_and_b32 s{sT2}, s{sT2}, 0xff
    s_and_b32 s{sT}, s{sT}, 0xff
    s_and_b32 s{sXCC}, s{sXCC}, 7
    s_or_b32 s{sT0x}, s{sT}, s{sXCC}
    s_lshl_b32 s{sA}, s{sHH}, 11
    s_lshl_b32 s{sB}, s{sW}, 6
    s_add_u32 s{sA}, s{sA}, s{sB}
    s_lshl_b32 s{sB}, s{sCG}, 8
    s_add_u32 s{sC}, s{sA}, s{sB}
    s_add_u32 s{sC}, s{sC}, {QA}
    v_add_u32 v{vt[5]}, s{sC}, v{vFR}
    v_add_u32 v{vt[6]}, {GA-QA}, v{vt[5]}
    s_lshl_b32 s{sA}, s{sG}, 13
    s_lshl_b32 s{sB}, s{sFS}, 9
    s_add_u32 s{sB}, s{sB}, {GA - QA}
    s_cmp_eq_u32 s{sVAL}, 0
    s_cselect_b32 s{sB}, 0, s{sB}
    s_cmp_lt_u32 s{sW}, 2
    s_cselect_b32 s{sB}, 0, s{sB}
    s_cselect_b32 s{sC}, 127, 31
    s_cselect_b32 s{sD}, 1, 2
    s_lshl_b32 s{sD}, s{sD}, 10
    s_add_u32 s{sA}, s{sA}, s{sB}
    s_add_u32 s{sA}, s{sA}, {QA + 4096}
    v_and_b32 v{vt[1]}, s{sC}, v0
    v_lshlrev_b32 v{vP1}, 4, v{vt[1]}
    v_add_u32 v{vP1}, s{sA}, v{vP1}
    v_lshlrev_b32 v{vP1W}, 3, v{vt[1]}
    v_add_u32 v{vP1W}, s{sD}, v{vP1W}
    s_waitcnt vmcnt(8)
    """)
    stamp()
    k("s_barrier")
    for tile, base in ((0, WQ), (1, GU)):
        for st in range(4):
            for hf in range(2):
                r = AF + tile*16 + st*4 + hf*2
                k(f"ds_read_b64_tr_b16 v[{r}:{r+1}], v{vTR} offset:{base + 4096*st + 2048*hf}")
    for tile, D in ((0, D0), (1, D1)):
        for st in range(4):
            r = AF + tile*16 + st*4
            k(f"s_waitcnt lgkmcnt({14 - tile*8 - st*2})")
            k(f"v_mfma_f32_16x16x32_bf16 v[{D}:{D+3}], v[{r}:{r+3}], v[{BF+4*st}:{BF+4*st+3}], " + ("0" if st == 0 else f"v[{D}:{D+3}]"))
    def tag(dst, src, t0):
        for i, t in enumerate((t0, sT1, sT2, sT3)):
            k(f"v_and_or_b32 v{dst+i}, v{src+i}, v{vMASK}, s{t}")
    k(f"s_lshl_b32 s{sD}, s{sW}, 13")
    k(f"s_add_u32 m0, s{sD}, {VV}")
    k("s_mov_b32 exec_lo, 0x00010001")
    k("s_mov_b32 exec_hi, 0x00010001")
    k("s_nop 1")
    tag(T, D0, sT0x)
    k(f"global_store_dwordx4 v{vt[5]}, v[{T}:{T+3}], s[26:27] sc1")
    k(f"s_cmp_eq_u32 s{sVAL}, 0")
    k(f"s_cselect_b64 exec, 0, exec")
    k.lines.pop(); k.lines.pop()
    tag(T+4, D1, sT0x)
    k(f"s_cmp_eq_u32 s{sVAL}, 0")
    k(f"s_cselect_b32 s{sA}, {0x100000}, 0")
    k(f"v_add_u32 v{vt[6]}, s{sA}, v{vt[6]}")
    k(f"global_store_dwordx4 v{vt[6]}, v[{T+4}:{T+7}], s[26:27] sc1")
    k("s_mov_b64 exec, -1")
    stamp()
    def v_loads(i0, i1):
        for i in range(i0, i1):
            if i == 4:
                k(f"v_add_u32 v{vVe}, 0x1000, v{vVe}")
                k(f"v_add_u32 v{vVo}, 0x1000, v{vVo}")
                k(f"s_add_u32 m0, m0, 0x1000")
                k("s_nop 0")
            k(f"global_load_lds_dwordx4 v{vVo if i&1 else vVe}, s[8:9] offset:{1024*(i&3)}{NT}")
    v_loads(0, nv1)
    k(f"""
    v_and_b32 v{vt[1]}, 3, v{vL}
    v_lshl_add_u32 v{vPR}, v{vt[1]}, 8, v{vFR}       ; (n&3)*256 + g*16
    v_add_u32 v{vt[2]}, {QL}, v{vPR}
    v_mov_b32 v{vt[3]}, {ZL}
    s_mov_b32 s{sA}, 0xff00ff00
    s_mov_b32 s{sB}, 0xff00ff00
    v_cndmask_b32 v{vQA0}, v{vt[2]}, v{vt[3]}, s[{sA}:{sA+1}]
    v_cndmask_b32 v{vQA1}, v{vt[3]}, v{vt[2]}, s[{sA}:{sA+1}]
    v_and_b32 v{vt[2]}, 12, v{vL}
    s_lshl_b32 s{sA}, s{sW}, 6
    v_add3_u32 v{vPW}, v{vPR}, v{vt[2]}, s{sA}
    v_lshlrev_b32 v{vMXR}, 4, v{vt[1]}
    s_lshl_b32 s{sA}, s{sG}, 16
    s_lshl_b32 s{sB}, s{sS}, 9
    s_add_u32 s{sA}, s{sA}, s{sB}
    s_lshl_b32 s{sB}, s{sW}, 7
    s_add_u32 s{sA}, s{sA}, s{sB}
    s_add_u32 s{sA}, s{sA}, {OA}
    v_and_b32 v{vt[2]}, 4, v{vL}
    v_lshl_add_u32 v{vt[2]}, v{vt[2]}, 4, v{vFR}
    v_lshl_add_u32 v{vt[2]}, v{vt[1]}, 14, v{vt[2]}
    v_add_u32 v{vOST}, s{sA}, v{vt[2]}
    s_lshl_b32 s{sA}, s{sG}, 11
    s_lshl_b32 s{sB}, s{sS}, 4
    s_add_u32 s{sA}, s{sA}, s{sB}
    s_add_u32 s{sA}, s{sA}, {SA}
    v_lshlrev_b32 v{vt[2]}, 9, v{vt[1]}
    v_add_u32 v{vSST}, s{sA}, v{vt[2]}
    s_lshl_b32 s{sA}, s{sHH}, 14
    s_lshl_b32 s{sB}, s{sW}, 7
    s_add_u32 s{sA}, s{sA}, s{sB}
    s_add_u32 s{sA}, s{sA}, {OA}
    v_lshrrev_b32 v{vt[2]}, 3, v{vL}
    v_and_b32 v{vt[3]}, 7, v{vL}
    v_lshlrev_b32 v{vt[4]}, 4, v{vt[3]}
    v_lshl_add_u32 v{vt[4]}, v{vt[2]}, 11, v{vt[4]}
    v_add_u32 v{vH2}, s{sA}, v{vt[4]}
    s_lshl_b32 s{sA}, s{sHH}, 9
    s_add_u32 s{sA}, s{sA}, {SA}
    v_lshlrev_b32 v{vt[4]}, 4, v{vt[1]}
    v_lshl_add_u32 v{vt[4]}, v{vt[2]}, 6, v{vt[4]}
    v_add_u32 v{vH2S}, s{sA}, v{vt[4]}
    s_lshl_b32 s{sA}, s{sW}, 6
    s_add_u32 s{sA}, s{sA}, {OL}
    v_lshlrev_b32 v{vt[4]}, 3, v{vt[3]}
    v_lshl_add_u32 v{vt[4]}, v{vG16}, 1, v{vt[4]}
    v_add_u32 v{vOW}, s{sA}, v{vt[4]}
    v_mov_b32 v{ONES}, 0x3f803f80
    v_mov_b32 v{ONES+1}, 0x3f803f80
    v_mov_b32 v{ONES+2}, 0x3f803f80
    v_mov_b32 v{ONES+3}, 0x3f803f80
    s_waitcnt vmcnt({2+nv1})
    """)
    stamp()
    P = AF
    def poll1():
        for i in range(4):
            k(f"global_load_dwordx4 v[{P+4*i}:{P+4*i+3}], v{vP1}, s[26:27] offset:{2048*i-4096} sc1")
    poll1()
    v_loads(nv1, 8)
    k(f"s_lshl_b32 s{sD}, s{sW}, 11")
    k(f"s_add_u32 m0, s{sD}, {DN}")
    k("s_nop 0")
    k(f"global_load_lds_dwordx4 v{vDN}, s[20:21]{NT}")
    k(f"v_add_u32 v{vDN}, {16*1024-1024}, v{vDN}")
    k(f"global_load_lds_dwordx4 v{vDN}, s[20:21] offset:1024{NT}")
    k(f"s_lshl_b32 s{sD}, s{sW}, 12")
    k(f"s_add_u32 m0, s{sD}, {WO}")
    k(f"s_mov_b32 s{sSPIN}, 0")
    tile_loads(vWO, 12, 1024)
    nafter = (8-nv1) + 2 + 4
    k(f"s_waitcnt vmcnt({nafter})")
    k("L_chk1:")
    a0, a1 = vt[1], vt[2]
    def check(P, n, t0, split0):
        k(f"v_xor_b32 v{a0}, s{t0}, v{P}")
        k(f"v_xor_b32 v{a1}, s{sT1}, v{P+1}")
        first = True
        for i in range(n):
            for r, t in enumerate((t0, sT1, sT2, sT3)):
                if i == 0 and r < 2: continue
                acc = a0 if (r == 0 and split0) else (a0 if r in (0,2) and not split0 else a1)
                k(f"v_bitop3_b32 v{acc}, v{P+4*i+r}, s{t}, v{acc} bitop3:0xbe")
    check(P, 4, sT0x, True)
    k(f"""
    v_or_b32 v{vt[3]}, v{a0}, v{a1}
    v_and_b32 v{vt[3]}, 0xff, v{vt[3]}
    v_cmp_ne_u32 vcc, 0, v{vt[3]}
    s_cbranch_vccnz L_slow1
    L_ok1:
    """)
    stamp()
    for r in range(4):
        k(f"v_add_f32 v{P+r}, v{P+r}, v{P+4+r}")
        k(f"v_add_f32 v{P+8+r}, v{P+8+r}, v{P+12+r}")
    for r in range(4): k(f"v_add_f32 v{P+r}, v{P+r}, v{P+8+r}")
    k(f"""
    v_cvt_pk_bf16_f32 v{T}, v{P}, v{P+1}
    v_cvt_pk_bf16_f32 v{T+1}, v{P+2}, v{P+3}
    ds_write_b64 v{vP1W}, v[{T}:{T+1}]
    s_waitcnt lgkmcnt(0)
    s_barrier
    """)
    for t in range(2):
        for st in range(4):
            r = BF + (t*4+st)*4
            k(f"ds_read_b128 v[{r}:{r+3}], v{vQA1 if t else vQA0} offset:{64*st}")
    k(f"ds_read_b32 v{vt[6]}, v{vt[0]} offset:{FL}") if False else None
    for j in range(8):
        k(f"s_waitcnt lgkmcnt({7-j})")
        k(f"v_mfma_f32_16x16x32_bf16 v[{D0}:{D0+3}], v[{KF+4*j}:{KF+4*j+3}], v[{BF+4*j}:{BF+4*j+3}], " + ("0" if j == 0 else f"v[{D0}:{D0+3}]"))
    sa, sb, mx, tm = T, T+1, T+2, T+3
    k(f"""
    s_mov_b32 s{sA}, {SCALE}
    s_lshl_b32 s{sB}, s{sW}, 2
    v_add_u32 v{T+4}, s{sB}, v{vMXR}
    s_nop 4
    v_cndmask_b32 v{sa}, v{D0}, v{D0+2}, s[{sCM}:{sCM+1}]
    v_cndmask_b32 v{sb}, v{D0+1}, v{D0+3}, s[{sCM}:{sCM+1}]
    v_cvt_pk_bf16_f32 v{tm}, v{sa}, v{sb}
    v_lshlrev_b32 v{sa}, 16, v{tm}
    v_and_b32 v{sb}, 0xffff0000, v{tm}
    v_mul_f32 v{sa}, s{sA}, v{sa}
    v_mul_f32 v{sb}, s{sA}, v{sb}
    v_cvt_pk_bf16_f32 v{tm}, v{sa}, v{sb}
    v_lshlrev_b32 v{sa}, 16, v{tm}
    v_and_b32 v{sb}, 0xffff0000, v{tm}
    v_max_f32 v{mx}, v{sa}, v{sb}
    s_nop 1
    v_max_f32_dpp v{mx}, v{mx}, v{mx} row_ror:4 row_mask:0xf bank_mask:0xf
    s_nop 1
    v_max_f32_dpp v{mx}, v{mx}, v{mx} row_ror:8 row_mask:0xf bank_mask:0xf
    v_mov_b32 v{tm}, v{mx}
    s_nop 1
    v_permlane16_swap_b32 v{mx}, v{tm}
    v_max_f32 v{mx}, v{mx}, v{tm}
    v_mov_b32 v{tm}, v{mx}
    s_nop 1
    v_permlane32_swap_b32 v{mx}, v{tm}
    v_max_f32 v{mx}, v{mx}, v{tm}
    ds_write_b32 v{T+4}, v{mx} offset:{MX}
    s_waitcnt lgkmcnt(0)
    s_barrier
    ds_read_b128 v[{T+4}:{T+7}], v{vMXR} offset:{MX}
    v_mov_b32 v{T+8}, 0
    ds_read_b32 v{T+8}, v{T+8} offset:{FL}
    s_waitcnt lgkmcnt(1)
    v_max3_f32 v{mx}, v{T+4}, v{T+5}, v{T+6}
    v_max_f32 v{mx}, v{mx}, v{T+7}
    v_mul_f32 v{tm}, s{sL2E}, v{mx}
    v_fma_f32 v{sa}, v{sa}, s{sL2E}, -v{tm}
    v_fma_f32 v{sb}, v{sb}, s{sL2E}, -v{tm}
    v_exp_f32 v{sa}, v{sa}
    v_exp_f32 v{sb}, v{sb}
    s_nop 0
    v_cvt_pk_bf16_f32 v{tm}, v{sa}, v{sb}
    ds_write_b32 v{vPW}, v{tm} offset:{PL}
    s_waitcnt lgkmcnt(1)
    v_readfirstlane_b32 s{sNL}, v{T+8}
    """)
    hg, hu, ht = T+9, T+10, T+11
    k(f"""
    v_lshlrev_b32 v{vt[1]}, 1, v{vL}
    ds_read_u16 v{hg}, v{vt[1]} offset:{GL}
    ds_read_u16 v{hu}, v{vt[1]} offset:{GL+128}
    s_waitcnt lgkmcnt(0)
    v_lshlrev_b32 v{hg}, 16, v{hg}
    v_lshlrev_b32 v{hu}, 16, v{hu}
    v_mul_f32 v{ht}, s{sL2E}, v{hg}
    v_exp_f32 v{ht}, -v{ht}
    s_nop 0
    v_add_f32 v{ht}, 1.0, v{ht}
    v_rcp_f32 v{ht}, v{ht}
    s_nop 0
    v_mul_f32 v{hg}, v{hg}, v{ht}
    v_cvt_pk_bf16_f32 v{hg}, v{hg}, v{hg}
    v_lshlrev_b32 v{hg}, 16, v{hg}
    v_mul_f32 v{hg}, v{hg}, v{hu}
    v_cvt_pk_bf16_f32 v{hg}, v{hg}, v{hg}
    ds_write_b16 v{vt[1]}, v{hg} offset:{HL}
    s_waitcnt vmcnt(6) lgkmcnt(0)
    """)
    stamp()
    k("s_barrier")
    for ks in range(4):
        k(f"ds_read_b128 v[{BF+4*ks}:{BF+4*ks+3}], v{vPR} offset:{PL+64*ks}")
    for ks in range(4):
        for dt in range(2):
            for hf in range(2):
                r = AF + (ks*2+dt)*4 + hf*2
                k(f"ds_read_b64_tr_b16 v[{r}:{r+1}], v{vTRV1 if dt else vTRV0} offset:{(32*ks+16*hf)*256}")
    k("s_waitcnt lgkmcnt(15)")
    k("s_waitcnt lgkmcnt(12)")
    for ks in range(4):
        k(f"v_mfma_f32_16x16x32_bf16 v[{DL}:{DL+3}], v[{ONES}:{ONES+3}], v[{BF+4*ks}:{BF+4*ks+3}], " + ("0" if ks == 0 else f"v[{DL}:{DL+3}]"))
    for ks in range(4):
        for dt, D in ((0, D0), (1, D1)):
            r = AF + (ks*2+dt)*4
            k(f"s_waitcnt lgkmcnt({14 - (ks*2+dt)*2})")
            k(f"v_mfma_f32_16x16x32_bf16 v[{D}:{D+3}], v[{r}:{r+3}], v[{BF+4*ks}:{BF+4*ks+3}], " + ("0" if ks == 0 else f"v[{D}:{D+3}]"))
    k(f"""
    v_and_or_b32 v{T+4}, v{mx}, v{vMASK}, s{sT}
    v_and_or_b32 v{T+5}, v{DL}, v{vMASK}, s{sT1}
    v_mov_b32 v{T+6}, s{sT2}
    v_mov_b32 v{T+7}, s{sT3}
    s_nop 3
    """)
    for r in range(4):
        k(f"v_cndmask_b32 v{T+12+r}, v{D0+r}, v{D1+r}, s[{sCM}:{sCM+1}]")
    tag(T+12, T+12, sT)
    k(f"""
    s_mov_b32 exec_lo, 0x00ff00ff
    s_mov_b32 exec_hi, 0x00ff00ff
    s_cmp_lg_u32 s{sNL}, 0
    s_cbranch_scc1 L_pub2_far
    global_store_dwordx4 v{vOST}, v[{T+12}:{T+15}], s[26:27]
    s_mov_b64 exec, 15
    global_store_dwordx4 v{vSST}, v[{T+4}:{T+7}], s[26:27]
    L_pub2_done:
    s_mov_b64 exec, -1
    """)
    stamp()
    P2 = T+16
    def poll2():
        k(f"global_load_dwordx4 v[{PF}:{PF+3}], v{vH2S}, s[26:27] sc1")
        for i in range(4):
            k(f"global_load_dwordx4 v[{P2+4*i}:{P2+4*i+3}], v{vH2}, s[26:27] offset:{512*i} sc1")
    poll2()
    k(f"""
    v_add_u32 v{vTR}, 0x10000, v{vTR}
    s_waitcnt vmcnt(11)
    s_barrier
    """)
    for st in range(2):
        k(f"ds_read_b128 v[{BF+4*st}:{BF+4*st+3}], v{vFR} offset:{HL+64*st}")
    for st in range(2):
        for hf in range(2):
            r = AF + st*4 + hf*2
            k(f"ds_read_b64_tr_b16 v[{r}:{r+1}], v{vTR} offset:{DN - 0x10000 + 4096*st + 2048*hf}")
    k(f"""
    s_lshl_b32 s{sA}, s{sCG}, 14
    s_lshl_b32 s{sB}, s{sW}, 12
    s_add_u32 s{sB}, s{sB}, {FA}
    s_add_u32 s{sA}, s{sA}, s{sB}
    s_lshl_b32 s{sC}, s{sHH}, 6
    s_add_u32 s{sA}, s{sA}, s{sC}
    v_add_u32 v{vF3}, s{sA}, v{vFR}
    s_lshl_b32 s{sA}, s{sOC}, 14
    s_add_u32 s{sA}, s{sA}, s{sB}
    s_lshl_b32 s{sC}, s{sFG}, 6
    s_add_u32 s{sA}, s{sA}, s{sC}
    s_add_u32 s{sA}, s{sA}, 2048
    s_cmp_eq_u32 s{sVAL}, 0
    s_cselect_b32 s{sC}, {0x100000}, 0
    s_add_u32 s{sA}, s{sA}, s{sC}
    v_add_u32 v{vt[5]}, s{sA}, v{vFR}
    s_waitcnt lgkmcnt(2)
    v_mfma_f32_16x16x32_bf16 v[{D0}:{D0+3}], v[{AF}:{AF+3}], v[{BF}:{BF+3}], 0
    s_waitcnt lgkmcnt(0)
    v_mfma_f32_16x16x32_bf16 v[{D0}:{D0+3}], v[{AF+4}:{AF+7}], v[{BF+4}:{BF+7}], v[{D0}:{D0+3}]
    s_mov_b32 exec_lo, 0x00010001
    s_mov_b32 exec_hi, 0x00010001
    s_nop 5
    """)
    tag(T, D0, sT)
    k(f"""
    global_store_dwordx4 v{vt[5]}, v[{T}:{T+3}], s[26:27] sc1
    s_mov_b64 exec, -1
    s_waitcnt vmcnt(8)
    """)
    stamp()
    k("s_barrier")
    for st in range(4):
        for hf in range(2):
            r = AF + st*4 + hf*2
            k(f"ds_read_b64_tr_b16 v[{r}:{r+1}], v{vTR} offset:{WO - 0x10000 + 4096*st + 2048*hf}")
    k(f"s_mov_b32 s{sSPIN}, 0")
    k("s_waitcnt vmcnt(1)")
    k("L_chk2:")
    check(P2, 4, sT, False)
    for r, t in enumerate((sT, sT1, sT2, sT3)):
        k(f"v_bitop3_b32 v{a0 if r in (0,2) else a1}, v{PF+r}, s{t}, v{a0 if r in (0,2) else a1} bitop3:0xbe")
    m_, M_, w_, wl = T, T+1, T+2, T+3
    k(f"""
    v_or_b32 v{vt[3]}, v{a0}, v{a1}
    v_and_b32 v{vt[3]}, 0xff, v{vt[3]}
    v_cmp_ne_u32 vcc, 0, v{vt[3]}
    s_cbranch_vccnz L_slow2
    """)
    stamp()
    def allred(op, v, tmp):
        k(f"""
        s_nop 1
        {op}_dpp v{v}, v{v}, v{v} quad_perm:[1,0,3,2] row_mask:0xf bank_mask:0xf
        s_nop 1
        {op}_dpp v{v}, v{v}, v{v} quad_perm:[2,3,0,1] row_mask:0xf bank_mask:0xf
        s_nop 1
        {op}_dpp v{v}, v{v}, v{v} row_ror:8 row_mask:0xf bank_mask:0xf
        v_mov_b32 v{tmp}, v{v}
        s_nop 1
        v_permlane16_swap_b32 v{v}, v{tmp}
        {op} v{v}, v{v}, v{tmp}
        v_mov_b32 v{tmp}, v{v}
        s_nop 1
        v_permlane32_swap_b32 v{v}, v{tmp}
        {op} v{v}, v{v}, v{tmp}
        """)
    k(f"v_and_b32 v{m_}, v{vMASK}, v{PF}")
    k(f"v_mov_b32 v{M_}, v{m_}")
    allred("v_max_f32", M_, T+4)
    k(f"""
    v_sub_f32 v{w_}, v{m_}, v{M_}
    v_mul_f32 v{w_}, s{sL2E}, v{w_}
    v_exp_f32 v{w_}, v{w_}
    s_nop 0
    v_mul_f32 v{wl}, v{w_}, v{PF+1}
    """)
    ACC = T+8
    for i in range(4):
        for r in range(4):
            op = "v_mul_f32_dpp" if i == 0 else "v_fmac_f32_dpp"
            k(f"{op} v{ACC+r}, v{w_}, v{P2+4*i+r} quad_perm:[{i},{i},{i},{i}] row_mask:0xf bank_mask:0xf")
    allred("v_add_f32", wl, T+4)
    k(f"""
    v_rcp_f32 v{wl}, v{wl}
    v_permlane32_swap_b32 v{ACC}, v{ACC+2}
    v_permlane32_swap_b32 v{ACC+1}, v{ACC+3}
    v_add_f32 v{ACC}, v{ACC}, v{ACC+2}
    v_add_f32 v{ACC+1}, v{ACC+1}, v{ACC+3}
    s_nop 1
    v_permlane16_swap_b32 v{ACC}, v{ACC+1}
    v_add_f32 v{ACC}, v{ACC}, v{ACC+1}
    s_nop 1
    v_add_f32_dpp v{ACC}, v{ACC}, v{ACC} row_ror:8 row_mask:0xf bank_mask:0xf
    v_mul_f32 v{ACC}, v{ACC}, v{wl}
    v_cvt_pk_bf16_f32 v{ACC}, v{ACC}, v{ACC}
    ds_write_b16 v{vOW}, v{ACC}
    s_waitcnt lgkmcnt(0)
    s_barrier
    """)
    for st in range(4):
        k(f"ds_read_b128 v[{BF+4*st}:{BF+4*st+3}], v{vFR} offset:{OL+64*st}")
    for st in range(4):
        k(f"s_waitcnt lgkmcnt({3-st})")
        k(f"v_mfma_f32_16x16x32_bf16 v[{D0}:{D0+3}], v[{AF+4*st}:{AF+4*st+3}], v[{BF+4*st}:{BF+4*st+3}], " + ("0" if st == 0 else f"v[{D0}:{D0+3}]"))
    k(f"""
    s_mov_b32 exec_lo, 0x00010001
    s_mov_b32 exec_hi, 0x00010001
    s_lshl_b32 s{sA}, s{sW}, 8
    s_or_b32 s{sA}, s{sA}, s2
    s_nop 3
    """)
    tag(T, D0, sT)
    k(f"""
    global_store_dwordx4 v{vF3}, v[{T}:{T+3}], s[26:27] sc1
    s_mov_b64 exec, -1
    """)
    stamp()
    k(f"""
    s_cmp_ge_u32 s{sA}, 32
    s_cbranch_scc1 L_fin
    """)
    R = AF
    k(f"""
    s_lshl_b32 s{sA}, s2, 12
    s_add_u32 s{sA}, s{sA}, {FA}
    v_add_u32 v{vt[5]}, s{sA}, v{vt[0]}
    v_mov_b32 v{R+12}, s{sT}
    v_mov_b32 v{R+13}, s{sT1}
    v_mov_b32 v{R+14}, s{sT2}
    v_mov_b32 v{R+15}, s{sT3}
    v_and_b32 v{vt[4]}, 3, v{vL}
    v_and_b32 v{vt[6]}, 1, v{vG16}
    v_lshl_add_u32 v{vt[4]}, v{vt[4]}, 2, v{vt[6]}
    s_lshl_b32 s{sA}, s2, 4
    v_add_lshl_u32 v{vt[4]}, v{vt[4]}, s{sA}, 1
    ds_read_u16 v{T+16}, v{vt[4]} offset:{XR}
    ds_read_u16 v{T+17}, v{vt[4]} offset:{XR+4}
    s_mov_b32 s{sSPIN}, 0
    L_poll3:
    global_load_dwordx4 v[{R}:{R+3}], v{vt[5]}, s[26:27] sc1
    global_load_dwordx4 v[{R+4}:{R+7}], v{vt[5]}, s[26:27] offset:1024 sc1
    global_load_dwordx4 v[{R+8}:{R+11}], v{vt[5]}, s[26:27] offset:2048 sc1
    s_mov_b32 exec_hi, 0x0000ffff
    global_load_dwordx4 v[{R+12}:{R+15}], v{vt[5]}, s[26:27] offset:3072 sc1
    s_mov_b32 exec_hi, -1
    s_add_u32 s{sSPIN}, s{sSPIN}, 1
    s_cmp_ge_u32 s{sSPIN}, {SPIN_MAX}
    s_waitcnt vmcnt(0)
    s_cbranch_scc1 L_go3
    """)
    check(R, 4, sT, False)
    k(f"""
    v_or_b32 v{vt[3]}, v{a0}, v{a1}
    v_and_b32 v{vt[3]}, 0xff, v{vt[3]}
    v_cmp_ne_u32 vcc, 0, v{vt[3]}
    s_cbranch_vccnz L_poll3
    L_go3:
    """)
    stamp()
    for r in range(4):
        k(f"v_add_f32 v{R+r}, v{R+r}, v{R+4+r}")
        k(f"v_add_f32 v{R+8+r}, v{R+8+r}, v{R+12+r}")
    k("s_nop 0")
    for r in range(4): k(f"v_permlane32_swap_b32 v{R+r}, v{R+8+r}")
    for r in range(4): k(f"v_add_f32 v{R+r}, v{R+r}, v{R+8+r}")
    y0, y1 = R, R+2
    k(f"""
    s_nop 0
    v_permlane16_swap_b32 v{R}, v{R+1}
    v_permlane16_swap_b32 v{R+2}, v{R+3}
    v_add_f32 v{y0}, v{R}, v{R+1}
    v_add_f32 v{y1}, v{R+2}, v{R+3}
    s_nop 0
    v_add_f32_dpp v{y0}, v{y0}, v{y0} row_ror:4 row_mask:0xf bank_mask:0xf
    v_add_f32_dpp v{y1}, v{y1}, v{y1} row_ror:4 row_mask:0xf bank_mask:0xf
    s_nop 0
    v_add_f32_dpp v{y0}, v{y0}, v{y0} row_ror:8 row_mask:0xf bank_mask:0xf
    v_add_f32_dpp v{y1}, v{y1}, v{y1} row_ror:8 row_mask:0xf bank_mask:0xf
    v_cvt_pk_bf16_f32 v{T}, v{y0}, v{y1}
    v_lshlrev_b32 v{y0}, 16, v{T}
    v_and_b32 v{y1}, 0xffff0000, v{T}
    v_mul_f32 v{T+1}, s{sL2E}, v{y0}
    v_mul_f32 v{T+2}, s{sL2E}, v{y1}
    v_exp_f32 v{T+1}, -v{T+1}
    v_exp_f32 v{T+2}, -v{T+2}
    s_nop 0
    v_add_f32 v{T+1}, 1.0, v{T+1}
    v_add_f32 v{T+2}, 1.0, v{T+2}
    v_rcp_f32 v{T+1}, v{T+1}
    v_rcp_f32 v{T+2}, v{T+2}
    s_nop 0
    v_mul_f32 v{T+1}, v{y0}, v{T+1}
    v_mul_f32 v{T+2}, v{y1}, v{T+2}
    v_cvt_pk_bf16_f32 v{T+3}, v{T+1}, v{T+2}
    s_waitcnt lgkmcnt(0)
    v_lshlrev_b32 v{T+16}, 16, v{T+16}
    v_permlane32_swap_b32 v{T+3}, v{T+4}
    v_lshlrev_b32 v{T+17}, 16, v{T+17}
    v_lshlrev_b32 v{T+1}, 16, v{T+4}
    v_and_b32 v{T+2}, 0xffff0000, v{T+4}
    v_mul_f32 v{T+1}, v{y0}, v{T+1}
    v_mul_f32 v{T+2}, v{y1}, v{T+2}
    v_cvt_pk_bf16_f32 v{T}, v{T+1}, v{T+2}
    v_lshlrev_b32 v{T+1}, 16, v{T}
    v_and_b32 v{T+2}, 0xffff0000, v{T}
    v_add_f32 v{T+1}, v{T+16}, v{T+1}
    v_add_f32 v{T+2}, v{T+17}, v{T+2}
    v_cvt_pk_bf16_f32 v{T}, v{T+1}, v{T+2}
    s_mov_b64 exec, 0x000f000f
    global_store_short v{vt[4]}, v{T}, s[22:23]
    global_store_short_d16_hi v{vt[4]}, v{T}, s[22:23] offset:4
    s_cmp_lg_u32 s2, 0
    s_cbranch_scc1 L_fin
    s_mov_b64 exec, 1
    v_mov_b32 v{T+5}, 0
    v_mov_b32 v{T+6}, s{sE}
    global_store_dword v{T+5}, v{T+6}, s[26:27] sc1
    L_fin:
    """)
    if stamps:
        stamp()
        n = nst[0]
        k("s_mov_b64 exec, -1")
        k("s_waitcnt lgkmcnt(0)")
        for j in range(16):
            k(f"v_mov_b32 v{16+j}, " + (f"s{64+2*j}" if j < n else "0"))
        k(f"""
        s_lshl_b32 s{sA}, s2, 2
        s_add_u32 s{sA}, s{sA}, s{sW}
        s_lshl_b32 s{sA}, s{sA}, 6
        s_add_u32 s{sA}, s{sA}, {TS}
        v_mov_b32 v32, s{sA}
        s_mov_b64 exec, 1
        global_store_dwordx4 v32, v[16:19], s[26:27]
        global_store_dwordx4 v32, v[20:23], s[26:27] offset:16
        global_store_dwordx4 v32, v[24:27], s[26:27] offset:32
        global_store_dwordx4 v32, v[28:31], s[26:27] offset:48
        """)
    k("L_end:")
    k("s_endpgm")
    k(f"""
    L_slow1:
    v_and_b32 v{vt[3]}, 0xf8, v{a0}
    v_and_b32 v{vt[4]}, 0xff, v{a1}
    v_or_b32 v{vt[3]}, v{vt[3]}, v{vt[4]}
    v_cmp_ne_u32 vcc, 0, v{vt[3]}
    s_cbranch_vccnz L_retry1
    v_mov_b32 v{vt[3]}, 0
    v_mov_b32 v{vt[4]}, 1
    ds_write_b32 v{vt[3]}, v{vt[4]} offset:{FL}
    s_branch L_ok1
    L_retry1:
    s_add_u32 s{sSPIN}, s{sSPIN}, 1
    s_cmp_ge_u32 s{sSPIN}, {SPIN_MAX}
    s_cbranch_scc1 L_ok1
    """)
    poll1()
    k(f"""
    s_waitcnt vmcnt(0)
    s_branch L_chk1
    L_pub2_far:
    global_store_dwordx4 v{vOST}, v[{T+12}:{T+15}], s[26:27] sc1
    s_mov_b64 exec, 15
    global_store_dwordx4 v{vSST}, v[{T+4}:{T+7}], s[26:27] sc1
    s_branch L_pub2_done
    L_slow2:
    s_add_u32 s{sSPIN}, s{sSPIN}, 1
    s_cmp_ge_u32 s{sSPIN}, {SPIN_MAX}
    s_cbranch_scc1 L_end
    """)
    poll2()
    k(f"""
    s_waitcnt vmcnt(0)
    s_branch L_chk2
    """)
    body = k.text()
    s = wrap(body, 256, 256, LDS_SIZE, vgpr=NV, extra_desc="  .amdhsa_float_denorm_mode_32 3\n")
    s = s.replace(".p2align 8\n.type", ".p2align 12\n.p2align 8\n.type")
    return s
if __name__ == "__main__":
    import build
    open("k1.s","w").write(gen()); build.build("k1.s")
    open("k1_ts.s","w").write(gen(stamps=True)); build.build("k1_ts.s")
```

```python
import build, subprocess
def leak(s, nm, label, argmax=False):
    s = s.replace("_kernel:\n", "_kernel:\n    s_memrealtime s[64:65]\n", 1)
    assert s.count(label + ":\n") == 1
    s = s.replace(label + ":\n", label + ":\n    s_memrealtime s[66:67]\n")
    old = [l for l in s.split("\n") if l.strip().startswith("global_store_dword v7, v150")][0] + "\n"
    ext = "    s_and_b32 s48, s48, 31\n    s_mul_i32 s48, s48, 40\n" if argmax else "    s_lshr_b32 s48, s48, 5\n    s_lshl_b32 s48, s48, 1\n"
    s = s.replace(old, old + f"""L_pad0:
    s_memrealtime s[50:51]
    s_waitcnt lgkmcnt(0)
    s_sub_u32 s50, s50, s64
    s_cmp_lt_u32 s50, 1250
    s_cbranch_scc1 L_pad0
    global_load_dword v40, v7, s[24:25] sc1
    s_waitcnt vmcnt(0)
    v_readfirstlane_b32 s48, v40
{ext}    s_add_u32 s48, s48, 1400
L_pad:
    s_memrealtime s[50:51]
    s_waitcnt lgkmcnt(0)
    s_sub_u32 s50, s50, s64
    s_cmp_lt_u32 s50, s48
    s_cbranch_scc1 L_pad
    s_endpgm
""")
    s = s.replace("L_fin:\n", """L_fin:
    s_mov_b64 exec, 1
    v_lshrrev_b32 v40, 6, v0
    s_waitcnt lgkmcnt(0)
    s_sub_u32 s66, s66, s64
    s_lshl_b32 s66, s66, 5
    s_or_b32 s66, s66, s29
    v_cmp_ne_u32 vcc, 1, v40
    s_cbranch_vccnz L_nw
    s_cmp_lg_u32 s28, 0
    s_cbranch_scc1 L_nw
    v_mov_b32 v41, s66
    global_atomic_umax v7, v41, s[24:25] sc1
L_nw:
""")
    open(nm, "w").write(s); co = build.build(nm)
    o = subprocess.run(["llvm-objdump", "-d", "--mcpu=gfx950", co], capture_output=True, text=True).stdout
    assert "3000 <L_p2>" in o, nm
    return "work/" + nm
if __name__ == "__main__":
    base = open("final6.s").read()
    print([leak(base, "lF_qpub.s", "L_p2"), leak(base, "lF_qok.s", "L_ok1"), leak(base, "lF_prdy.s", "L_hskip"), leak(base, "lF_opub.s", "L_pub2_done"), leak(base, "lF_hret.s", "L_hret"), leak(base, "lF_opub_arg.s", "L_pub2_done", True)])
```
